```python
import torch

def _softmax(x, axis=-1):
    return torch.softmax(x, dim=axis)

def _gelu(x):
    return torch.nn.functional.gelu(x, approximate='tanh')

def _silu(x):
    return torch.nn.functional.silu(x)

def _sigmoid(x):
    return torch.sigmoid(x)

def _layernorm(x, axis=-1, eps=1e-05):
    m = x.mean(dim=axis, keepdim=True)
    v = x.var(dim=axis, keepdim=True, unbiased=False)
    return (x - m) / torch.sqrt(v + eps)

def _scatter_add(tgt, idx, src, axis=0):
    return tgt.clone().index_add_(axis, idx, src)

def _segment_sum(src, seg, n):
    out = torch.zeros((n,) + src.shape[1:], dtype=src.dtype)
    return out.index_add_(0, seg, src)

def _pad(x, pw):
    flat = tuple((v for pair in reversed(pw) for v in pair))
    return torch.nn.functional.pad(x, flat)
kernel_name = 'adaLN_cond__gqa_block_cached__glu_gated_swiglu__decode'

def setup_inputs():

    _w = lambda a: (lambda t: t.to(torch.bfloat16) if t.is_floating_point() else t)(torch.as_tensor(a))

    def _A_setup():
        B, Sq, D = (2, 1, 576)
        Hq, Hkv, Sk, Dh = (32, 16, 8192, 128)
        assert Hq % Hkv == 0, (Hq, Hkv)
        return {'x': _w((lambda *s: torch.randn(*s, dtype=torch.bfloat16) * 0.1)(B, Sq, D)), 'k_cache': _w((lambda *s: torch.randn(*s, dtype=torch.bfloat16) * 0.8)(B, Hkv, Sk, Dh)), 'v_cache': _w((lambda *s: torch.randn(*s, dtype=torch.bfloat16) * 3.2)(B, Hkv, Sk, Dh)), 'wq': _w((lambda *s: torch.randn(*s, dtype=torch.bfloat16) * 0.8)(D, Hq * Dh) * D ** (-0.5)), 'wo': _w((lambda *s: torch.randn(*s, dtype=torch.bfloat16) * 3.2)(Hq * Dh, D) * (Hq * Dh) ** (-0.5))}
    _A_in = _A_setup()

    def _B_setup():
        B, S, D, F = (2, 1, 576, 4608)
        return {'x': _w((lambda *s: torch.randn(*s, dtype=torch.bfloat16) * 0.1)(B, S, D)), 'w1': _w((lambda *s: torch.randn(*s, dtype=torch.bfloat16) * 3.2)(D, F) * (2.0 / D) ** 0.5), 'w3': _w((lambda *s: torch.randn(*s, dtype=torch.bfloat16) * 3.2)(D, F) * (2.0 / D) ** 0.5), 'w2': _w((lambda *s: torch.randn(*s, dtype=torch.bfloat16) * 3.2)(F, D) * (2.0 / F) ** 0.5)}
    _B_in = _B_setup()
    return {'A_x': _A_in['x'], 'A_k_cache': _A_in['k_cache'], 'A_v_cache': _A_in['v_cache'], 'A_wq': _A_in['wq'], 'A_wo': _A_in['wo'], 'B_x': _B_in['x'], 'B_w1': _B_in['w1'], 'B_w3': _B_in['w3'], 'B_w2': _B_in['w2'], 'c': _w((lambda *s: torch.randn(*s, dtype=torch.bfloat16) * 0.4)(2, 576) * 8.0), 'w_mod': _w((lambda *s: torch.randn(*s, dtype=torch.bfloat16) * 0.4)(576, 6 * 576) * 576 ** (-0.5) * 8.0)}

def reference(A_x, A_k_cache, A_v_cache, A_wq, A_wo, B_x, B_w1, B_w3, B_w2, c, w_mod):

    def _A_ref(x, k_cache, v_cache, wq, wo):
        B, Sq, D = x.shape
        Hq, Dh = (32, 128)
        Hkv = k_cache.shape[1]
        rep = Hq // Hkv
        q = (lambda x, *d: x.permute(*d))((x @ wq).reshape(B, Sq, Hq, Dh), 0, 2, 1, 3)
        k = (lambda x, n, axis: torch.repeat_interleave(x, n, dim=axis))(k_cache, rep, axis=1)
        v = (lambda x, n, axis: torch.repeat_interleave(x, n, dim=axis))(v_cache, rep, axis=1)
        scores = torch.einsum('bhqd,bhkd->bhqk', q, k) * Dh ** (-0.5)
        p = _softmax(scores, axis=-1)
        o = torch.einsum('bhqk,bhkd->bhqd', p, v)
        return (lambda x, *d: x.permute(*d))(o, 0, 2, 1, 3).reshape(B, Sq, Hq * Dh) @ wo

    def _B_ref(x, w1, w3, w2):
        gate = torch.einsum('bsd,df->bsf', x, w1)
        up = torch.einsum('bsd,df->bsf', x, w3)
        h = _silu(gate) * up
        out = torch.einsum('bsf,fd->bsd', h, w2)
        return out
    x = A_x
    mod = (_silu(c) @ w_mod).reshape(c.shape[0], 6, 1, -1)
    sa, ca, ga, sb, cb, gb = (mod[:, 0].clone(), mod[:, 1].clone(), mod[:, 2].clone(), mod[:, 3].clone(), mod[:, 4].clone(), mod[:, 5].clone())
    h = _layernorm(x, axis=-1) * (1 + ca) + sa
    x = x + ga * _A_ref(h, A_k_cache, A_v_cache, A_wq, A_wo)
    h = _layernorm(x, axis=-1) * (1 + cb) + sb
    x = x + gb * _B_ref(h, B_w1, B_w3, B_w2)
    return x
```

```python
NAME = 'adaLN_cond__gqa_block_cached__glu_gated_swiglu__decode'
def header(A, nthreads, lds):
    A(f'; @launch grid=(256,1,1) block=({nthreads},1,1) lds={lds}')
    A('.amdgcn_target "amdgcn-amd-amdhsa--gfx950"')
    A('.text')
    A(f'.globl {NAME}_kernel')
    A('.p2align 8')
    A(f'.type {NAME}_kernel,@function')
    A(f'{NAME}_kernel:')
def footer(A, nv, acc=None):
    A('.section .rodata,"a"\n.p2align 6')
    A(f'.amdhsa_kernel {NAME}_kernel')
    A(f'  .amdhsa_next_free_vgpr {nv}\n  .amdhsa_next_free_sgpr 96\n  .amdhsa_accum_offset {acc or nv}')
    A('  .amdhsa_group_segment_fixed_size 0\n  .amdhsa_kernarg_size 112\n  .amdhsa_user_sgpr_count 2\n  .amdhsa_user_sgpr_kernarg_segment_ptr 1\n  .amdhsa_system_sgpr_workgroup_id_x 1')
    A('.end_amdhsa_kernel')

def gen(nwaves=8, depth=8, pol='nt', inter='wave', wgmap='lin', rot=0, kv='seq', gran=1, dma=False, path='stream.s', lds=140000):
    per_wave = 256 // nwaves
    nv = min(256, 512 // (nwaves // 4))
    L = []
    A = L.append
    header(A, nwaves * 64, lds)
    A('  s_cmp_ge_u32 s2, 256')
    A('  s_cbranch_scc1 L_end')
    A('  s_memrealtime s[20:21]')
    A('  s_load_dwordx4 s[4:7], s[0:1], 8')
    A('  s_load_dwordx2 s[16:17], s[0:1], 104')
    A('  v_lshrrev_b32 v1, 6, v0')
    A('  v_and_b32 v2, 63, v0')
    A('  v_readfirstlane_b32 s3, v1')
    A('  s_waitcnt lgkmcnt(0)')
    A('  s_memrealtime s[22:23]')
    A('  s_mov_b32 s8, s4\n  s_mov_b32 s9, s5\n  s_mov_b32 s10, 0x4000000\n  s_mov_b32 s11, 0x20000')
    A('  s_mov_b32 s12, s6\n  s_mov_b32 s13, s7\n  s_mov_b32 s14, 0x4000000\n  s_mov_b32 s15, 0x20000')
    A('  s_mov_b32 s18, 0x10000000\n  s_mov_b32 s19, 0x20000')
    if wgmap == 'lin':
        A('  s_lshl_b32 s24, s2, 18')
    elif wgmap == 'xcd':
        A('  s_and_b32 s24, s2, 7\n s_lshl_b32 s24, s24, 5\n s_lshr_b32 s25, s2, 3\n s_add_u32 s24, s24, s25\n s_lshl_b32 s24, s24, 18')
    elif wgmap == 'split8':
        A(f'  s_lshr_b32 s24, s2, 3\n s_lshl_b32 s24, s24, 21\n s_and_b32 s25, s2, 7\n s_mul_i32 s25, s25, {nwaves*gran*1024}\n s_add_u32 s24, s24, s25')
    elif wgmap == 'glob':
        A(f'  s_mul_i32 s24, s2, {nwaves*gran*1024}')
    if inter == 'wave':
        A(f'  s_mul_i32 s25, s3, {per_wave*1024}')
    else:
        A(f'  s_mul_i32 s25, s3, {gran*1024}')
    A('  s_add_u32 s24, s24, s25')
    A('  v_lshlrev_b32 v3, 4, v2')
    if dma:
        A(f'  s_mul_i32 s40, s3, {16*1024}')
    nreg = (nv - 8) // 4
    cnt = 0
    seq = []
    if kv == 'seq':
        seq = [(0, i) for i in range(per_wave)] + [(1, i) for i in range(per_wave)]
    else:
        for i in range(per_wave):
            seq += [(0, i), (1, i)]
    if rot:
        pass
    for (t, i) in seq:
        srd = 's[8:11]' if t == 0 else 's[12:15]'
        blk, ins = divmod(i, gran)
        if inter == 'wave':
            off = i * 1024
        else:
            stride = nwaves * gran * 1024
            if wgmap == 'split8': stride *= 8
            if wgmap == 'glob': stride *= 256
            off = blk * stride + ins * 1024
        so = off & ~0xfff
        io = off & 0xfff
        if dma:
            so = off; io = 0
            A(f'  s_add_u32 s26, s24, {so}')
            A(f'  s_add_u32 m0, s40, {(cnt % 16) * 1024}')
            A('  s_nop 0')
            A(f'  buffer_load_dwordx4 v3, {srd}, s26 offen {pol} lds')
        else:
            A(f'  s_add_u32 s26, s24, {so}')
            r = 8 + (cnt % nreg) * 4
            A(f'  buffer_load_dwordx4 v[{r}:{r+3}], v3, {srd}, s26 offen offset:{io} {pol}')
        cnt += 1
        if cnt >= depth:
            A(f'  s_waitcnt vmcnt({depth-1})')
    A('  s_waitcnt vmcnt(0)')
    A('  s_memrealtime s[28:29]')
    A('  s_waitcnt lgkmcnt(0)')
    A(f'  s_mul_i32 s25, s2, {nwaves}\n  s_add_u32 s25, s25, s3\n  s_lshl_b32 s25, s25, 4')
    A('  v_mov_b32 v4, s20\n  v_mov_b32 v5, s22\n  v_mov_b32 v6, s28\n s_getreg_b32 s30, hwreg(HW_REG_XCC_ID)\n v_mov_b32 v7, s30\n v_mov_b32 v3, 0')
    A('  v_cmp_eq_u32 vcc, 0, v2\n  s_and_saveexec_b64 s[30:31], vcc')
    A('  buffer_store_dwordx4 v[4:7], v3, s[16:19], s25 offen')
    A('L_end:')
    A('  s_endpgm')
    footer(A, nv)
    open(path, 'w').write('\n'.join(L) + '\n')
```

```python
from gen_stream2 import header, footer
import sys
def gen(nseg=48, seg_instr=32, nwg=1, pre=False):
    L = []
    A = L.append
    header(A, 64, 65536)
    A(f'''
  s_cmp_ge_u32 s2, {nwg}
  s_cbranch_scc1 L_end
  s_load_dwordx2 s[16:17], s[0:1], 104
  s_waitcnt lgkmcnt(0)
  s_mov_b32 s18, 0x10000000
  s_mov_b32 s19, 0x20000
  v_mov_b32 v1, 0
  v_mov_b32 v2, 0
  s_mov_b32 s33, 0
''')
    if pre:
        A('''
  s_getpc_b64 s[4:5]
  v_lshlrev_b32 v4, 7, v0
''')
        for i in range((nseg * (seg_instr * 8 + 24) + 8191) // 8192):
            A(f'  global_load_dword v5, v4, s[4:5]\n v_add_u32 v4, 8192, v4')
        A('  s_waitcnt vmcnt(0)')
    A('L_again:')
    A('  s_memtime s[20:21]\n s_waitcnt lgkmcnt(0)')
    for s in range(nseg):
        for i in range(seg_instr):
            A(f'  v_fma_f32 v{40 + i % 8}, v1, v2, v{40 + i % 8}')
        A(f'  s_memtime s[22:23]\n s_waitcnt lgkmcnt(0)\n s_sub_u32 s24, s22, s20\n v_writelane_b32 v10, s24, {s}\n s_mov_b32 s20, s22')
    A(f'''
  v_lshlrev_b32 v3, 2, v0
  s_lshl_b32 s25, s2, 9
  s_lshl_b32 s26, s33, 8
  s_add_u32 s25, s25, s26
  buffer_store_dword v10, v3, s[16:19], s25 offen
  s_add_u32 s33, s33, 1
  s_cmp_lt_u32 s33, 2
  s_cbranch_scc1 L_again
L_end:
  s_endpgm
''')
    footer(A, 64)
    open('t_icache.s', 'w').write('\n'.join(L) + '\n')
if __name__ == '__main__':
    import os
    gen()
    if os.path.exists('/dev/kfd'):
        from runner import *
        env = Env()
        for nwg, pre in [(1, False), (1, True), (256, False), (256, True)]:
            gen(nwg=nwg, pre=pre)
            k = build('t_icache.s')
            for it in range(3):
                env.reinit('cold')
                env.run(*k)
                w = env.get_ws(0, 128 * nwg).reshape(nwg, 2, 64)[:, :, :48]
                print(nwg, pre, 'first', w[0, 0], 'sum', w[0,0].sum(), 'meansum', w[:, 0].sum(1).mean(), 'second sum', w[0, 1].sum())
            k[0].unload()
```
